```python
import torch

def _softmax(x, axis=-1):
    return torch.softmax(x, dim=axis)
def _gelu(x):
    return torch.nn.functional.gelu(x, approximate="tanh")
def _silu(x):
    return torch.nn.functional.silu(x)
def _sigmoid(x):
    return torch.sigmoid(x)
def _layernorm(x, axis=-1, eps=1e-5):
    m = x.mean(dim=axis, keepdim=True)
    v = x.var(dim=axis, keepdim=True, unbiased=False)
    return (x - m) / torch.sqrt(v + eps)
def _scatter_add(tgt, idx, src, axis=0):
    return tgt.clone().index_add_(axis, idx, src)
def _segment_sum(src, seg, n):
    out = torch.zeros((n,) + src.shape[1:], dtype=src.dtype)
    return out.index_add_(0, seg, src)
def _pad(x, pw):
    flat = tuple(v for pair in reversed(pw) for v in pair)
    return torch.nn.functional.pad(x, flat)

kernel_name = 'standalone__gqa_softmax__near_ridge'

def setup_inputs():

    _w = (lambda a: (lambda t: t.to(torch.bfloat16) if t.is_floating_point() else t)(torch.as_tensor(a)))
    B, Hq, Hkv, Sq, Sk, D = 8, 16, 8, 144, 1024, 256
    return {
        "q": _w((lambda *s: torch.randn(*s, dtype=torch.bfloat16) * 0.8)(B, Hq, Sq, D)),
        "k": _w((lambda *s: torch.randn(*s, dtype=torch.bfloat16) * 0.8)(B, Hkv, Sk, D)),
        "v": _w((lambda *s: torch.randn(*s, dtype=torch.bfloat16) * 0.05)(B, Hkv, Sk, D)),
    }

def reference(q, k, v):
    B, Hq, Sq, D = q.shape
    Hkv = k.shape[1]
    rep = Hq // Hkv
    k = (lambda x, n, axis: torch.repeat_interleave(x, n, dim=axis))(k, rep, axis=1)
    v = (lambda x, n, axis: torch.repeat_interleave(x, n, dim=axis))(v, rep, axis=1)
    scale = D ** -0.5
    scores = torch.einsum("bhqd,bhkd->bhqk", q, k) * scale
    p = _softmax(scores, axis=-1)
    return torch.einsum("bhqk,bhkd->bhqd", p, v)
```

```python
import sys
def gen(name="standalone__gqa_softmax__near_ridge_kernel"):
    L = []
    def e(s): L.append("    " + s)
    L.append(f".globl {name}\n.p2align 8\n.type {name},@function\n{name}:")
    e("s_cmp_ge_u32 s2, 576")
    e(f"s_cbranch_scc1 L_done_{name}")
    e("s_load_dwordx4 s[4:7], s[0:1], 0")
    e("s_load_dwordx4 s[8:11], s[0:1], 16")
    e(f"s_mov_b32 s3, {(1<<32)//9+1}")
    e("s_mul_hi_u32 s30, s2, s3")
    e("s_lshl_b32 s31, s2, 14")
    e("s_lshl_b32 s32, s30, 19")
    e("v_and_b32 v1, 31, v0")
    e("v_lshrrev_b32 v2, 5, v0")
    e("v_lshlrev_b32 v3, 9, v1")
    e("v_lshlrev_b32 v4, 4, v2")
    e("v_add_u32 v3, v3, v4")
    e("v_lshlrev_b32 v5, 4, v0")
    e("v_lshrrev_b32 v6, 4, v0")
    e("v_and_b32 v7, 15, v0")
    e("v_lshrrev_b32 v8, 1, v6")
    e("v_lshlrev_b32 v8, 2, v8")
    e("v_lshrrev_b32 v9, 2, v7")
    e("v_add_u32 v8, v8, v9")
    e("v_lshlrev_b32 v8, 9, v8")
    e("v_and_b32 v9, 1, v6")
    e("v_lshlrev_b32 v9, 5, v9")
    e("v_and_b32 v10, 3, v7")
    e("v_lshlrev_b32 v10, 3, v10")
    e("v_add3_u32 v8, v8, v9, v10")
    e("s_waitcnt lgkmcnt(0)")
    e("s_mov_b32 s12, s4"); e("s_mov_b32 s13, s5"); e("s_mov_b32 s14, 9437184"); e("s_mov_b32 s15, 0x20000")
    e("s_mov_b32 s16, s6"); e("s_mov_b32 s17, s7"); e("s_mov_b32 s18, 33554432"); e("s_mov_b32 s19, 0x20000")
    e("s_mov_b32 s20, s8"); e("s_mov_b32 s21, s9"); e("s_mov_b32 s22, 33554432"); e("s_mov_b32 s23, 0x20000")
    e("s_mov_b32 s24, s10"); e("s_mov_b32 s25, s11"); e("s_mov_b32 s26, 9437184"); e("s_mov_b32 s27, 0x20000")
    for s in range(16):
        e(f"buffer_load_dwordx4 a[{4*s}:{4*s+3}], v3, s[12:15], s31 offen offset:{32*s}")
    for r in range(128, 256):
        e(f"v_mov_b32 v{r}, 0")
    e("v_mov_b32 v11, 0xf149f2ca")
    e("v_mov_b32 v12, 0")
    e("s_mov_b32 s33, 0x3db8aa3b")
    e("s_mov_b32 s34, 0")
    L.append(f"L_loop_{name}:")
    for s in range(16):
        e(f"buffer_load_dwordx4 a[{64+4*s}:{64+4*s+3}], v3, s[16:19], s32 offen offset:{32*s}")
    e("s_mov_b32 s35, s32")
    e("s_mov_b32 m0, 0")
    for n in range(16):
        if n % 4 == 0 and n:
            e("s_add_u32 s35, s35, 4096")
            e(f"s_mov_b32 m0, {n*1024}")
        e("s_nop 0")
        e(f"buffer_load_dwordx4 v5, s[20:23], s35 offen offset:{(n%4)*1024} lds")
    e("s_waitcnt vmcnt(0)")
    for r in range(32, 48):
        e(f"v_mov_b32 v{r}, 0")
    e("s_nop 2")
    for s in range(16):
        e(f"v_mfma_f32_32x32x16_bf16 v[32:47], a[{64+4*s}:{64+4*s+3}], a[{4*s}:{4*s+3}], v[32:47]")
    e("s_nop 15")
    e("v_max3_f32 v13, v32, v33, v34")
    for r in range(35, 47, 2):
        e(f"v_max3_f32 v13, v13, v{r}, v{r+1}")
    e("v_max_f32 v13, v13, v47")
    e("v_mov_b32 v14, v13")
    e("s_nop 1")
    e("v_permlane32_swap_b32 v13, v14")
    e("s_nop 1")
    e("v_max_f32 v13, v13, v14")
    e("v_mul_f32 v13, s33, v13")
    e("v_max_f32 v13, v13, v11")
    e("v_sub_f32 v15, v11, v13")
    e("v_exp_f32 v15, v15")
    e("v_mov_b32 v11, v13")
    for r in range(32, 48):
        e(f"v_fma_f32 v{r}, v{r}, s33, -v13")
    for r in range(32, 48):
        e(f"v_exp_f32 v{r}, v{r}")
    e("s_nop 0")
    e("v_mul_f32 v12, v12, v15")
    for r in range(32, 48):
        e(f"v_add_f32 v12, v12, v{r}")
    for i in range(8):
        e(f"v_cvt_pk_bf16_f32 v{48+i}, v{32+2*i}, v{33+2*i}")
    for r in range(128, 256):
        e(f"v_mul_f32 v{r}, v{r}, v15")
    for u in range(2):
        for dt in range(8):
            e(f"ds_read_b64_tr_b16 v[{64+4*dt}:{64+4*dt+1}], v8 offset:{(16*u)*512 + dt*64}")
            e(f"ds_read_b64_tr_b16 v[{64+4*dt+2}:{64+4*dt+3}], v8 offset:{(16*u+8)*512 + dt*64}")
        e("s_waitcnt lgkmcnt(0)")
        for dt in range(8):
            e(f"v_mfma_f32_32x32x16_bf16 v[{128+16*dt}:{128+16*dt+15}], v[{64+4*dt}:{64+4*dt+3}], v[{48+4*u}:{48+4*u+3}], v[{128+16*dt}:{128+16*dt+15}]")
        e("s_nop 15")
    e("s_add_u32 s32, s32, 16384")
    e("s_add_u32 s34, s34, 1")
    e("s_cmp_lt_u32 s34, 32")
    e(f"s_cbranch_scc1 L_loop_{name}")
    e("s_nop 15")
    e("v_mov_b32 v14, v12")
    e("s_nop 1")
    e("v_permlane32_swap_b32 v12, v14")
    e("s_nop 1")
    e("v_add_f32 v12, v12, v14")
    e("v_rcp_f32 v12, v12")
    e("s_nop 1")
    e("v_lshlrev_b32 v3, 9, v1")
    e("v_lshlrev_b32 v4, 3, v2")
    e("v_add_u32 v3, v3, v4")
    for dt in range(8):
        for g in range(4):
            r = 128 + 16 * dt + 4 * g
            for x in range(4):
                e(f"v_mul_f32 v{r+x}, v{r+x}, v12")
            e(f"v_cvt_pk_bf16_f32 v{r}, v{r}, v{r+1}")
            e(f"v_cvt_pk_bf16_f32 v{r+1}, v{r+2}, v{r+3}")
            e(f"buffer_store_dwordx2 v[{r}:{r+1}], v3, s[24:27], s31 offen offset:{(32*dt+8*g)*2}")
    e("s_waitcnt vmcnt(0)")
    L.append(f"L_done_{name}:")
    e("s_endpgm")
    desc = f""".amdhsa_kernel {name}
  .amdhsa_next_free_vgpr 384
  .amdhsa_next_free_sgpr 102
  .amdhsa_accum_offset 256
  .amdhsa_group_segment_fixed_size 0
  .amdhsa_kernarg_size 48
  .amdhsa_user_sgpr_count 2
  .amdhsa_user_sgpr_kernarg_segment_ptr 1
  .amdhsa_system_sgpr_workgroup_id_x 1
.end_amdhsa_kernel"""
    return "\n".join(L), desc
if __name__ == "__main__":
    body, desc = gen()
    s = "; @launch grid=(576,1,1) block=(64,1,1) lds=16384\n.amdgcn_target \"amdgcn-amd-amdhsa--gfx950\"\n.text\n" + body + "\n.section .rodata,\"a\"\n.p2align 6\n" + desc + "\n"
    open("simple.s", "w").write(s)
```

```python
import sys, re
from gen_simple import gen
def split(f, newname):
    s = open(f).read()
    launch = re.search(r"; @launch grid=(\(\S+\)) block=(\(\S+\)) lds=(\d+)", s)
    body = s[s.index(".globl"):s.index(".section .rodata")]
    desc = s[s.index(".amdhsa_kernel"):]
    old = "standalone__gqa_softmax__near_ridge_kernel"
    body = body.replace(old, newname).replace("L_done", "L_done_" + newname)
    desc = desc.replace(old, newname)
    return launch.groups(), body, desc
out = sys.argv[1]
seq = sys.argv[2:]
hdr = []; bodies = {}; descs = {}
for x in seq:
    if x == "simple":
        nm = "standalone__gqa_softmax__near_ridge_kernel"
        b, d = gen(nm)
        hdr.append(f"; @launch kernel={nm} grid=(576,1,1) block=(64,1,1) lds=16384")
    else:
        nm = re.sub(r"\W", "_", x) + "_kernel"
        (g, bl, lds), b, d = split(x, nm)
        hdr.append(f"; @launch kernel={nm} grid={g} block={bl} lds={lds}")
    bodies[nm] = b; descs[nm] = d
s = "\n".join(hdr) + "\n.amdgcn_target \"amdgcn-amd-amdhsa--gfx950\"\n.text\n" + "\n".join(bodies.values()) + "\n.section .rodata,\"a\"\n" + "\n".join(".p2align 6\n" + d for d in descs.values()) + "\n"
open(out, "w").write(s)
```
